```python
import torch

def _softmax(x, axis=-1):
    return torch.softmax(x, dim=axis)

def _gelu(x):
    return torch.nn.functional.gelu(x, approximate='tanh')

def _silu(x):
    return torch.nn.functional.silu(x)

def _sigmoid(x):
    return torch.sigmoid(x)

def _layernorm(x, axis=-1, eps=1e-05):
    m = x.mean(dim=axis, keepdim=True)
    v = x.var(dim=axis, keepdim=True, unbiased=False)
    return (x - m) / torch.sqrt(v + eps)

def _scatter_add(tgt, idx, src, axis=0):
    return tgt.clone().index_add_(axis, idx, src)

def _segment_sum(src, seg, n):
    out = torch.zeros((n,) + src.shape[1:], dtype=src.dtype)
    return out.index_add_(0, seg, src)

def _pad(x, pw):
    flat = tuple((v for pair in reversed(pw) for v in pair))
    return torch.nn.functional.pad(x, flat)
kernel_name = 'adaLN_cond__mha_block__dense_activation_relu__prompt'

def setup_inputs():

    _w = lambda a: (lambda t: t.to(torch.bfloat16) if t.is_floating_point() else t)(torch.as_tensor(a))

    def _A_setup():
        B, S, D, H = (1, 2048, 640, 32)
        return {'x': _w((lambda *s: torch.randn(*s, dtype=torch.bfloat16) * 0.05)(B, S, D)), 'wqkv': _w((lambda *s: torch.randn(*s, dtype=torch.bfloat16) * 0.05)(D, 3 * D)), 'wo': _w((lambda *s: torch.randn(*s, dtype=torch.bfloat16) * 0.05)(D, D))}
    _A_in = _A_setup()

    def _B_setup():
        B, S, D, Dff = (1, 2048, 640, 1728)
        return {'x': _w((lambda *s: torch.randn(*s, dtype=torch.bfloat16) * 0.05)(B, S, D)), 'w1': _w((lambda *s: torch.randn(*s, dtype=torch.bfloat16) * 0.05)(D, Dff)), 'w2': _w((lambda *s: torch.randn(*s, dtype=torch.bfloat16) * 0.05)(Dff, D))}
    _B_in = _B_setup()
    return {'A_x': _A_in['x'], 'A_wqkv': _A_in['wqkv'], 'A_wo': _A_in['wo'], 'B_x': _B_in['x'], 'B_w1': _B_in['w1'], 'B_w2': _B_in['w2'], 'c': _w((lambda *s: torch.randn(*s, dtype=torch.bfloat16) * 0.1)(1, 640) * 8.0), 'w_mod': _w((lambda *s: torch.randn(*s, dtype=torch.bfloat16) * 0.1)(640, 6 * 640) * 640 ** (-0.5) * 8.0)}

def reference(A_x, A_wqkv, A_wo, B_x, B_w1, B_w2, c, w_mod):

    def _A_ref(x, wqkv, wo):
        B, S, D = x.shape
        H = 32
        Dh = D // H
        qkv = (lambda x, *d: x.permute(*d))((x @ wqkv).reshape(B, S, 3, H, Dh), 2, 0, 3, 1, 4)
        q, k, v = (qkv[0], qkv[1], qkv[2])
        scores = torch.einsum('bhqd,bhkd->bhqk', q, k) * Dh ** (-0.5)
        p = _softmax(scores, axis=-1)
        o = torch.einsum('bhqk,bhkd->bhqd', p, v)
        return (lambda x, *d: x.permute(*d))(o, 0, 2, 1, 3).reshape(B, S, D) @ wo

    def _B_ref(x, w1, w2):
        h = torch.einsum('bsd,df->bsf', x, w1)
        zero = torch.zeros_like(h)
        h = torch.maximum(h, zero)
        return torch.einsum('bsf,fd->bsd', h, w2)
    x = A_x
    mod = (_silu(c) @ w_mod).reshape(c.shape[0], 6, 1, -1)
    sa, ca, ga, sb, cb, gb = (mod[:, 0].clone(), mod[:, 1].clone(), mod[:, 2].clone(), mod[:, 3].clone(), mod[:, 4].clone(), mod[:, 5].clone())
    h = _layernorm(x, axis=-1) * (1 + ca) + sa
    x = x + ga * _A_ref(h, A_wqkv, A_wo)
    h = _layernorm(x, axis=-1) * (1 + cb) + sb
    x = x + gb * _B_ref(h, B_w1, B_w2)
    return x
```

```python
import sys
from runner import *

def make(flags, nwaves, depth, lds, nkb, share):
    per = nkb // nwaves
    s = f"""; @launch grid=(256,1,1) block=(512,1,1) lds=100000
.amdgcn_target "amdgcn-amd-amdhsa--gfx950"
.text
.globl t_kernel
.p2align 8
.type t_kernel,@function
t_kernel:
    s_load_dwordx4 s[4:7], s[0:1], 0
    v_lshrrev_b32 v1, 6, v0
    v_and_b32 v2, 63, v0
    v_readfirstlane_b32 s18, v1
    v_lshlrev_b32 v2, 4, v2
    s_and_b32 s20, s2, 7
    s_lshr_b32 s21, s2, 3
    s_lshr_b32 s21, s21, {share}
    s_lshl_b32 s21, s21, 3
    s_add_u32 s20, s20, s21
    s_mul_i32 s20, s20, {nkb*1024}
    s_mul_i32 s21, s18, {per*1024}
    s_add_u32 s20, s20, s21
    s_waitcnt lgkmcnt(0)
    s_mov_b32 s8, s4
    s_mov_b32 s9, s5
    s_mov_b32 s10, 0x8000000
    s_mov_b32 s11, 0x20000
    s_lshl_b32 m0, s18, 10
    s_mov_b32 s23, 0
L_pass:
    s_barrier
    s_memtime s[24:25]
    s_mov_b32 s21, s20
    s_mov_b32 s22, {per}
L_loop:
"""
    s += (f"    buffer_load_dwordx4 v2, s[8:11], s21 offen {flags} lds\n" if lds else f"    buffer_load_dwordx4 v[4:7], v2, s[8:11], s21 offen {flags}\n")
    s += f"""    s_add_u32 s21, s21, 1024
    s_sub_u32 s22, s22, 1
    s_cmp_lg_u32 s22, 0
    s_waitcnt vmcnt({depth-1})
    s_cbranch_scc1 L_loop
    s_waitcnt vmcnt(0)
    s_barrier
    s_memtime s[28:29]
    s_waitcnt lgkmcnt(0)
    s_mov_b32 s31, s30
    s_sub_u32 s30, s28, s24
    s_add_u32 s23, s23, 1
    s_cmp_lt_u32 s23, 2
    s_cbranch_scc1 L_pass
    v_mov_b32 v4, s31
    v_mov_b32 v5, s30
    s_lshl_b32 s3, s2, 3
    v_mov_b32 v3, s3
    v_cmp_eq_u32 vcc, 0, v0
    s_and_saveexec_b64 s[22:23], vcc
    s_cbranch_execz L_end
    global_store_dwordx2 v3, v[4:5], s[6:7]
L_end:
    s_endpgm
.section .rodata,"a"
.p2align 6
.amdhsa_kernel t_kernel
  .amdhsa_next_free_vgpr 64
  .amdhsa_next_free_sgpr 40
  .amdhsa_accum_offset 64
  .amdhsa_group_segment_fixed_size 0
  .amdhsa_kernarg_size 16
  .amdhsa_user_sgpr_count 2
  .amdhsa_user_sgpr_kernarg_segment_ptr 1
  .amdhsa_system_sgpr_workgroup_id_x 1
.end_amdhsa_kernel
"""
    return s

if __name__ == "__main__":
    dry = "--dry" in sys.argv
    if not dry:
        A = cl.DeviceBuffer(128 << 20); out = cl.DeviceBuffer(1 << 16); big = cl.DeviceBuffer(64 << 20)
    nkb = 128
    for flags in ("", "sc1"):
        for lds in (0, 1):
            for (nw, depth) in ((1, 1), (1, 8), (1, 16), (1, 32), (1, 60), (4, 4), (4, 8), (4, 16), (8, 8)):
                co = build(make(flags, nw, depth, lds, nkb, 3), "t_kernel", 2, "ub_l")
                if dry:
                    continue
                k = cl.AsmKernel(co, "t_kernel", check=False)
                vals = []
                for t in range(3):
                    cl.hip_check(cl._hip.hipMemset(A.ptr, t, 32 << 20)); cl.hip_check(cl._hip.hipMemset(big.ptr, t, 64 << 20)); sync()
                    k.launch((256, 1, 1), (64 * nw, 1, 1), cl.pack_ptr_kernargs([A.ptr, out.ptr]), 100000)
                    sync()
                    o = out.to_numpy(np.uint32, (256, 2)).astype(np.int64)
                    vals.append(np.median(o, axis=0))
                v = np.median(np.array(vals), axis=0)
                print(f"flags={flags:3s} lds={lds} waves={nw} depth={depth:2d}: first pass {v[0]:6.0f} cyc ({nkb*1024/v[0]:5.1f} B/clk)  second {v[1]:6.0f} cyc ({nkb*1024/v[1]:5.1f} B/clk) lat~{v[1]*depth*nw/nkb:5.0f}/{v[0]*depth*nw/nkb:5.0f}")
                k.unload()
```

```python
import sys
from runner import *

def make(lds, compute, share, nkb=512, depth=16):
    per = nkb // 4
    M = lambda i: f"    v_mfma_f32_16x16x32_bf16 v[{64+4*(i%4)}:{67+4*(i%4)}], v[{96+4*(i%8)}:{99+4*(i%8)}], v[{48+4*((i//2)%4)}:{51+4*((i//2)%4)}], v[{64+4*(i%4)}:{67+4*(i%4)}]\n"
    s = f"""; @launch grid=(256,1,1) block=(512,1,1) lds=163840
.amdgcn_target "amdgcn-amd-amdhsa--gfx950"
.text
.globl t_kernel
.p2align 8
.type t_kernel,@function
t_kernel:
    s_load_dwordx4 s[4:7], s[0:1], 0
    v_lshrrev_b32 v1, 6, v0
    v_and_b32 v2, 63, v0
    v_readfirstlane_b32 s18, v1
    v_lshlrev_b32 v2, 4, v2
    s_and_b32 s20, s2, 7
    s_lshr_b32 s21, s2, 3
    s_lshr_b32 s21, s21, {share}
    s_lshl_b32 s21, s21, 3
    s_add_u32 s20, s20, s21
    s_mul_i32 s20, s20, {nkb*1024}
    s_and_b32 s19, s18, 3
    s_mul_i32 s21, s19, {per*1024}
    s_add_u32 s20, s20, s21
    s_waitcnt lgkmcnt(0)
    s_mov_b32 s8, s4
    s_mov_b32 s9, s5
    s_mov_b32 s10, 0x8000000
    s_mov_b32 s11, 0x20000
    s_lshl_b32 s22, s18, 14
    s_mov_b32 m0, s22
"""
    for k in range(16):
        s += f"    buffer_load_dwordx4 v2, s[8:11], s22 offen lds\n    s_add_u32 m0, m0, 1024\n    s_add_u32 s22, s22, 1024\n"
    for k in range(8):
        s += f"    buffer_load_dwordx4 v[{96+4*k}:{99+4*k}], v2, s[8:11], s22 offen offset:{(k%4)*1024}\n"
    s += f"""    s_waitcnt vmcnt(0)
    s_mov_b32 s23, 0
L_pass:
    s_barrier
    s_memtime s[24:25]
    s_memrealtime s[32:33]
    s_cmp_lt_u32 s18, 4
    s_cbranch_scc1 L_comp
    s_mov_b32 s21, s20
    s_mov_b32 s22, {per//8}
    s_lshl_b32 s26, s19, 13
    s_add_u32 s26, s26, 0x20000
L_loop:
    s_mov_b32 m0, s26
    s_nop 0
"""
    for k in range(8):
        if k == 4:
            s += "    s_add_u32 m0, m0, 4096\n    s_add_u32 s21, s21, 4096\n"
        s += (f"    buffer_load_dwordx4 v2, s[8:11], s21 offen offset:{(k%4)*1024} sc1 lds\n" if lds else f"    buffer_load_dwordx4 v[{4+4*k}:{7+4*k}], v2, s[8:11], s21 offen offset:{(k%4)*1024} sc1\n")
    s += f"""    s_add_u32 s21, s21, 4096
    s_sub_u32 s22, s22, 1
    s_cmp_lg_u32 s22, 0
    s_waitcnt vmcnt({depth})
    s_cbranch_scc1 L_loop
    s_waitcnt vmcnt(0)
    s_branch L_join
L_comp:
    s_mov_b32 s22, {compute}
    s_cmp_eq_u32 s22, 0
    s_cbranch_scc1 L_join
L_cl:
"""
    for i in range(32):
        s += M(i)
        if i % 2 == 0:
            s += f"    ds_read_b128 v[{48+4*((i//2+2)%4)}:{51+4*((i//2+2)%4)}], v2 offset:{(i//2)*4096}\n    s_waitcnt lgkmcnt(1)\n"
    s += f"""    s_sub_u32 s22, s22, 1
    s_cmp_lg_u32 s22, 0
    s_cbranch_scc1 L_cl
L_join:
    s_memtime s[28:29]
    s_memrealtime s[34:35]
    s_waitcnt lgkmcnt(0)
    s_mov_b32 s31, s30
    s_mov_b32 s37, s36
    s_sub_u32 s30, s28, s24
    s_sub_u32 s36, s34, s32
    s_add_u32 s23, s23, 1
    s_cmp_lt_u32 s23, 2
    s_cbranch_scc1 L_pass
    v_mov_b32 v4, s31
    v_mov_b32 v5, s30
    v_mov_b32 v6, s37
    v_mov_b32 v7, s36
    s_lshl_b32 s3, s2, 7
    s_lshl_b32 s19, s18, 4
    s_add_u32 s3, s3, s19
    v_mov_b32 v3, s3
    s_mov_b64 exec, 1
    global_store_dwordx4 v3, v[4:7], s[6:7]
    s_endpgm
.section .rodata,"a"
.p2align 6
.amdhsa_kernel t_kernel
  .amdhsa_next_free_vgpr 128
  .amdhsa_next_free_sgpr 48
  .amdhsa_accum_offset 128
  .amdhsa_group_segment_fixed_size 0
  .amdhsa_kernarg_size 16
  .amdhsa_user_sgpr_count 2
  .amdhsa_user_sgpr_kernarg_segment_ptr 1
  .amdhsa_system_sgpr_workgroup_id_x 1
.end_amdhsa_kernel
"""
    return s

if __name__ == "__main__":
    dry = "--dry" in sys.argv
    nkb = 256
    if not dry:
        rng = np.random.default_rng(0)
        f = rng.standard_normal(16 << 20).astype(np.float32)
        u = (f.view(np.uint32) >> 16).astype(np.uint16)
        src = cl.DeviceBuffer.from_numpy(u)
        A = cl.DeviceBuffer(128 << 20); out = cl.DeviceBuffer(1 << 16); big = cl.DeviceBuffer(64 << 20)
    for share in (3, 2):
        for lds in (0, 1):
            for comp in (0, 14):
                co = build(make(lds, comp, share, nkb), "t_kernel", 2, "ub_m")
                if dry:
                    continue
                k = cl.AsmKernel(co, "t_kernel", check=False)
                vals = []
                for t in range(3):
                    cl.hip_check(cl._hip.hipMemcpy(A.ptr, src.ptr, 32 << 20, 3)); cl.hip_check(cl._hip.hipMemset(big.ptr, t, 64 << 20)); sync()
                    k.launch((256, 1, 1), (512, 1, 1), cl.pack_ptr_kernargs([A.ptr, out.ptr]), 163840)
                    sync()
                    o = out.to_numpy(np.uint32, (256, 8, 4)).astype(np.int64)
                    vals.append(np.concatenate([np.median(o[:, 4:].max(1), axis=0), np.median(o[:, :4].max(1), axis=0)]))
                v = np.median(np.array(vals), axis=0)
                print(f"sharers={1<<share} lds={lds} compute={comp}: MALL pass {v[0]:5.0f} cyc {v[2]*10:5.0f} ns ({nkb*1024/v[0]:4.1f} B/clk, {nkb/v[2]*100:5.1f} KB/us) | L2 pass {v[1]:5.0f} cyc {v[3]*10:5.0f} ns ({nkb*1024/v[1]:4.1f} B/clk, {nkb/v[3]*100:5.1f} KB/us) | mfma {v[5]:5.0f} cyc {v[7]*10:5.0f} ns")
                k.unload()
```

```python
import sys
from runner import *
M = lambda i: f"    v_mfma_f32_16x16x32_bf16 v[{64+4*(i%5)}:{67+4*(i%5)}], v[40:43], v[44:47], v[{64+4*(i%5)}:{67+4*(i%5)}]\n"
def make(body, prio_a, prio_b, duty):
    s = f"""; @launch grid=(256,1,1) block=(512,1,1) lds=100000
.amdgcn_target "amdgcn-amd-amdhsa--gfx950"
.text
.globl t_kernel
.p2align 8
.type t_kernel,@function
t_kernel:
    s_load_dwordx2 s[4:5], s[0:1], 0
    v_lshrrev_b32 v1, 6, v0
    v_lshlrev_b32 v2, 4, v0
    v_readfirstlane_b32 s18, v1
    v_lshlrev_b32 v3, 2, v0
    v_lshlrev_b32 v4, 3, v0
    s_waitcnt lgkmcnt(0)
    s_barrier
    s_cmp_lt_u32 s18, 4
    s_cbranch_scc1 L_a
    s_setprio {prio_b}
    s_mov_b32 s22, 60
L_m:
"""
    for i in range(40):
        s += M(i)
        if duty and i % 5 == 4:
            s += f"    s_nop {duty-1}\n"
    s += f"""    s_sub_u32 s22, s22, 1
    s_cmp_lg_u32 s22, 0
    s_cbranch_scc1 L_m
    s_endpgm
L_a:
    s_setprio {prio_a}
    s_nop 15
    s_nop 15
    s_memtime s[24:25]
    s_waitcnt lgkmcnt(0)
{body}
    s_waitcnt lgkmcnt(0)
    s_memtime s[28:29]
    s_waitcnt lgkmcnt(0)
    s_sub_u32 s28, s28, s24
    v_mov_b32 v5, s28
    s_lshl_b32 s3, s2, 11
    v_add_u32 v3, s3, v3
    global_store_dword v3, v5, s[4:5]
    s_endpgm
.section .rodata,"a"
.p2align 6
.amdhsa_kernel t_kernel
  .amdhsa_next_free_vgpr 128
  .amdhsa_next_free_sgpr 48
  .amdhsa_accum_offset 128
  .amdhsa_group_segment_fixed_size 0
  .amdhsa_kernarg_size 8
  .amdhsa_user_sgpr_count 2
  .amdhsa_user_sgpr_kernarg_segment_ptr 1
  .amdhsa_system_sgpr_workgroup_id_x 1
.end_amdhsa_kernel
"""
    return s
B = {
 "none": "",
 "w128x10": "\n".join(f"    ds_write_b128 v2, v[{16+4*k}:{19+4*k}] offset:{k*4096}" for k in range(10)),
 "w64x20": "\n".join(f"    ds_write_b64 v4, v[{16+2*k}:{17+2*k}] offset:{k*2048}" for k in range(20)),
 "w32x40": "\n".join(f"    ds_write_b32 v3, v{16+k} offset:{k*1024}" for k in range(40)),
 "r128x10": "\n".join(f"    ds_read_b128 v[{16+4*k}:{19+4*k}], v2 offset:{k*4096}" for k in range(10)),
 "add40": "\n".join(f"    v_add_f32 v{16+k}, v{16+k}, v8" for k in range(40)),
 "fma40": "\n".join(f"    v_fma_f32 v{16+k}, v{16+k}, v8, v9" for k in range(40)),
 "cvt40": "\n".join(f"    v_cvt_pk_bf16_f32 v{16+k}, v8, v9" for k in range(40)),
 "pkmax40": "\n".join(f"    v_pk_max_i16 v{16+k}, v8, 0" for k in range(40)),
 "pkadd20": "\n".join(f"    v_pk_add_f32 v[{16+2*k}:{17+2*k}], v[8:9], v[10:11]" for k in range(20)),
 "perm16x10": "\n".join(f"    v_permlane16_swap_b32 v{16+2*k}, v{17+2*k}" for k in range(10)),
 "dpp40": "\n".join(f"    v_mov_b32_dpp v{16+k}, v8 quad_perm:[1,1,3,3] row_mask:0xf bank_mask:0xf" for k in range(40)),
}
if __name__ == "__main__":
    dry = "--dry" in sys.argv
    if not dry:
        out = cl.DeviceBuffer(1 << 20)
    for nm, b in B.items():
        res = []
        for (pa, pb, duty) in ((1, 0, 0), (0, 1, 0), (0, 1, 16), (1, 0, 16)):
            co = build(make(b, pa, pb, duty), "t_kernel", 1, "ub_d")
            if dry:
                continue
            k = cl.AsmKernel(co, "t_kernel", check=False)
            for t in range(2):
                k.launch((256, 1, 1), (512, 1, 1), cl.pack_ptr_kernargs([out.ptr]), 100000); sync()
            o = out.to_numpy(np.uint32, (256, 512))[:, :256]
            res.append(f"hi={pa} duty={duty}: {np.median(o):6.0f}")
            k.unload()
        print(f"{nm:10s} " + "  ".join(res))
```
